```python
import torch

def _softmax(x, axis=-1):
    return torch.softmax(x, dim=axis)
def _gelu(x):
    return torch.nn.functional.gelu(x, approximate="tanh")
def _silu(x):
    return torch.nn.functional.silu(x)
def _sigmoid(x):
    return torch.sigmoid(x)
def _layernorm(x, axis=-1, eps=1e-5):
    m = x.mean(dim=axis, keepdim=True)
    v = x.var(dim=axis, keepdim=True, unbiased=False)
    return (x - m) / torch.sqrt(v + eps)
def _scatter_add(tgt, idx, src, axis=0):
    return tgt.clone().index_add_(axis, idx, src)
def _segment_sum(src, seg, n):
    out = torch.zeros((n,) + src.shape[1:], dtype=src.dtype)
    return out.index_add_(0, seg, src)
def _pad(x, pw):
    flat = tuple(v for pair in reversed(pw) for v in pair)
    return torch.nn.functional.pad(x, flat)

kernel_name = 'interleave_layers__grouped_kv_mqa__dense_activation_gelu__prompt'

def setup_inputs():

    _w = (lambda a: (lambda t: t.to(torch.bfloat16) if t.is_floating_point() else t)(torch.as_tensor(a)))
    def _A_setup():
        B, S, D, H = 1, 2048, 448, 16
        Dh = D // H
        return {
            "x": _w((lambda *s: torch.randn(*s, dtype=torch.bfloat16) * 0.05)(B, S, D)),
            "wq": _w((lambda *s: torch.randn(*s, dtype=torch.bfloat16) * 0.05)(D, H * Dh)),
            "wk": _w((lambda *s: torch.randn(*s, dtype=torch.bfloat16) * 0.05)(D, Dh)),
            "wv": _w((lambda *s: torch.randn(*s, dtype=torch.bfloat16) * 0.05)(D, Dh)),
            "wo": _w((lambda *s: torch.randn(*s, dtype=torch.bfloat16) * 0.05)(H * Dh, D)),
        }
    _A_in = _A_setup()

    def _B_setup():
        B, S, D, F = 1, 2048, 448, 1792
        return {
            "x": _w((lambda *s: torch.randn(*s, dtype=torch.bfloat16) * 0.05)(B, S, D)),
            "w1": _w((lambda *s: torch.randn(*s, dtype=torch.bfloat16) * 0.8)(D, F) * (D ** -0.5)),
            "b1": _w((lambda *s: torch.randn(*s, dtype=torch.bfloat16) * 12.8)(F) * 0.01),
            "w2": _w((lambda *s: torch.randn(*s, dtype=torch.bfloat16) * 0.2)(F, D) * (F ** -0.5)),
            "b2": _w((lambda *s: torch.randn(*s, dtype=torch.bfloat16) * 1.6)(D) * 0.01),
        }
    _B_in = _B_setup()

    return {
        "A_x": _A_in["x"],
        "A_wq": _A_in["wq"],
        "A_wk": _A_in["wk"],
        "A_wv": _A_in["wv"],
        "A_wo": _A_in["wo"],
        "B_x": _B_in["x"],
        "B_w1": _B_in["w1"],
        "B_b1": _B_in["b1"],
        "B_w2": _B_in["w2"],
        "B_b2": _B_in["b2"],
    }

def reference(A_x, A_wq, A_wk, A_wv, A_wo, B_x, B_w1, B_b1, B_w2, B_b2):
    def _A_ref(x, wq, wk, wv, wo):
        B, S, D = x.shape
        H = 16
        Dh = D // H
        q = (lambda x, *d: x.permute(*d))((x @ wq).reshape(B, S, H, Dh), 0, 2, 1, 3)
        k = x @ wk
        v = x @ wv
        scores = torch.einsum("bhqd,bkd->bhqk", q, k) * (Dh ** -0.5)
        p = _softmax(scores, axis=-1)
        o = torch.einsum("bhqk,bkd->bhqd", p, v)
        return (lambda x, *d: x.permute(*d))(o, 0, 2, 1, 3).reshape(B, S, H * Dh) @ wo

    def _B_ref(x, w1, b1, w2, b2):
        h = torch.einsum("bsd,df->bsf", x, w1) + b1
        h = _gelu(h)
        return torch.einsum("bsf,fd->bsd", h, w2) + b2

    x = A_x
    x = x + _A_ref(_layernorm(x, axis=-1), A_wq, A_wk, A_wv, A_wo)
    x = x + _B_ref(_layernorm(x, axis=-1), B_w1, B_b1, B_w2, B_b2)
    x = x + _A_ref(_layernorm(x, axis=-1), A_wq, A_wk, A_wv, A_wo)
    x = x + _B_ref(_layernorm(x, axis=-1), B_w1, B_b1, B_w2, B_b2)
    return x
```

```python
import re

def v(i, n=1):
    return f"v{i}" if n == 1 else f"v[{i}:{i+n-1}]"
def a(i, n=1):
    return f"a{i}" if n == 1 else f"a[{i}:{i+n-1}]"
def s(i, n=1):
    return f"s{i}" if n == 1 else f"s[{i}:{i+n-1}]"

_REG = re.compile(r"^(-|\|)?(?:abs\(|neg\()?-?([vas])(?:(\d+)|\[(\d+):(\d+)\])\)?\|?$")
def regs_of(tok):
    tok = tok.strip()
    if tok in ("vcc",): return [("s", 106), ("s", 107)]
    if tok == "vcc_lo": return [("s", 106)]
    if tok == "vcc_hi": return [("s", 107)]
    if tok == "exec": return [("s", 126), ("s", 127)]
    if tok == "exec_lo": return [("s", 126)]
    if tok == "exec_hi": return [("s", 127)]
    if tok == "m0": return [("s", 124)]
    m = _REG.match(tok)
    if not m: return []
    f = m.group(2)
    if m.group(3) is not None:
        return [(f, int(m.group(3)))]
    return [(f, i) for i in range(int(m.group(4)), int(m.group(5)) + 1)]

TRANS = ("v_exp_f32", "v_log_f32", "v_rcp_f32", "v_rsq_f32", "v_sqrt_f32", "v_sin_f32", "v_cos_f32", "v_rcp_iflag_f32")

class Ins:
    def __init__(self, text):
        self.text = text
        t = text.split(";")[0].strip()
        self.label = None
        self.op = None
        self.w = []; self.r = []
        self.kind = "other"
        if not t:
            self.kind = "blank"; return
        if t.endswith(":"):
            self.label = t[:-1]; self.kind = "label"; return
        if t.startswith("."):
            self.kind = "directive"; return
        parts = t.split(None, 1)
        self.op = op = parts[0]
        rest = parts[1] if len(parts) > 1 else ""
        ops = [x.strip() for x in rest.split(",")] if rest else []
        mods = []
        if ops:
            last = ops[-1].split()
            if last:
                ops[-1] = last[0]; mods = last[1:]
        self.ops = ops; self.mods = mods
        R = lambda i: regs_of(ops[i]) if i < len(ops) else []
        base = re.sub(r"_(e32|e64|sdwa|dpp)$", "", op)
        self.base = base
        self.dpp = op.endswith("_dpp") or any(m.startswith(("quad_perm", "row_", "wave_")) for m in mods)
        if op.startswith("v_mfma") or op.startswith("v_smfmac"):
            self.kind = "mfma"
            self.w = R(0); self.A = R(1); self.B = R(2); self.C = R(3)
            self.r = self.A + self.B + self.C
            self.passes = 8 if "32x32x16" in op else 4 if "16x16x32" in op else 16
        elif op.startswith("v_"):
            self.kind = "valu"
            if base.startswith("v_cmpx"):
                self.w = R(0) + regs_of("exec"); self.r = R(1) + R(2)
            elif base.startswith("v_cmp"):
                self.w = R(0); self.r = R(1) + R(2)
            elif base in ("v_add_co_u32", "v_sub_co_u32", "v_subrev_co_u32"):
                self.w = R(0) + R(1); self.r = R(2) + R(3)
            elif base in ("v_addc_co_u32", "v_subb_co_u32"):
                self.w = R(0) + R(1); self.r = R(2) + R(3) + R(4)
            elif base.startswith("v_permlane") and "swap" in base:
                self.w = R(0) + R(1); self.r = R(0) + R(1)
            elif base == "v_swap_b32":
                self.w = R(0) + R(1); self.r = R(0) + R(1)
            elif base == "v_nop":
                pass
            else:
                self.w = R(0)
                for i in range(1, len(ops)): self.r += R(i)
                if base in ("v_fmac_f32", "v_dot2c_f32_bf16", "v_pk_fmac_f16", "v_writelane_b32") or self.dpp or op.endswith("_sdwa"):
                    self.r += R(0)
                if base == "v_cndmask_b32" and len(ops) == 3:
                    self.r += regs_of("vcc")
            self.trans = base in TRANS
        elif op.startswith("buffer_") or op.startswith("global_"):
            self.kind = "vmem"
            lds = "lds" in mods or "_lds_" in op
            self.lds = lds
            self.store = "store" in op or ("atomic" in op)
            if op.startswith("buffer_wbl2") or op.startswith("buffer_inv"):
                pass
            elif op.startswith("buffer_"):
                if lds:
                    for i in range(len(ops)): self.r += R(i)
                    self.r += regs_of("m0")
                elif "load" in op:
                    self.w = R(0)
                    for i in range(1, len(ops)): self.r += R(i)
                else:
                    self.data = R(0)
                    for i in range(len(ops)): self.r += R(i)
                    if "atomic" in op and "sc0" in mods: self.w = R(0)
            else:
                if lds:
                    for i in range(len(ops)): self.r += R(i)
                    self.r += regs_of("m0")
                elif "load" in op:
                    self.w = R(0)
                    for i in range(1, len(ops)): self.r += R(i)
                elif "atomic" in op and "sc0" in mods:
                    self.w = R(0)
                    for i in range(1, len(ops)): self.r += R(i)
                    self.data = R(2)
                else:
                    self.data = R(1)
                    for i in range(len(ops)): self.r += R(i)
        elif op.startswith("ds_"):
            self.kind = "ds"
            if "read" in op or "permute" in op or "swizzle" in op or "_rtn" in op:
                self.w = R(0)
                for i in range(1, len(ops)): self.r += R(i)
            else:
                for i in range(len(ops)): self.r += R(i)
        elif op.startswith("s_load") or op.startswith("s_buffer_load") or op in ("s_memtime", "s_memrealtime") or op.startswith("s_atomic"):
            self.kind = "smem"
            self.w = R(0)
            for i in range(1, len(ops)): self.r += R(i)
        elif op == "s_waitcnt":
            self.kind = "wait"
            self.vm = None; self.lgkm = None
            m = re.search(r"vmcnt\((\d+)\)", rest)
            if m: self.vm = int(m.group(1))
            m = re.search(r"lgkmcnt\((\d+)\)", rest)
            if m: self.lgkm = int(m.group(1))
        elif op == "s_nop":
            self.kind = "nop"; self.n = int(ops[0], 0) + 1
        elif op.startswith("s_cbranch") or op == "s_branch":
            self.kind = "branch"; self.target = ops[0]
            if "vcc" in op: self.r = regs_of("vcc")
            if "exec" in op: self.r = regs_of("exec")
        elif op in ("s_barrier", "s_endpgm", "s_setprio", "s_sleep", "s_sethalt"):
            self.kind = "sctl"
        elif op.startswith("s_"):
            self.kind = "salu"
            if op.startswith("s_cmp") or op.startswith("s_bitcmp"):
                for i in range(len(ops)): self.r += R(i)
            elif "saveexec" in op:
                self.w = R(0) + regs_of("exec"); self.r = R(1) + regs_of("exec")
            else:
                self.w = R(0)
                for i in range(1, len(ops)): self.r += R(i)
                if op in ("s_addk_i32", "s_mulk_i32"): self.r += R(0)

class Asm:
    def __init__(self):
        self.lines = []
    def __call__(self, text):
        for ln in text.split("\n"):
            if ln.strip():
                self.lines.append(ln.strip())
    def label(self, name):
        self.lines.append(name + ":")
    def text(self):
        out = []
        for ln in self.lines:
            out.append(ln if ln.endswith(":") or ln.startswith(".") else "    " + ln)
        return "\n".join(out) + "\n"

def linearize(ins, take_fwd=(), loop_count=2):
    lab = {x.label: i for i, x in enumerate(ins) if x.kind == "label"}
    seq = []
    cnt = {}
    i = 0
    steps = 0
    while i < len(ins):
        steps += 1
        assert steps < 2000000
        x = ins[i]
        if x.kind in ("label", "blank", "directive"):
            i += 1; continue
        seq.append((i, x))
        if x.op == "s_endpgm":
            break
        if x.kind == "branch":
            t = lab.get(x.target)
            if t is None:
                i += 1; continue
            if x.op == "s_branch":
                if t <= i:
                    c = cnt.get(i, 0)
                    if c >= loop_count: break
                    cnt[i] = c + 1
                i = t; continue
            if t <= i:
                c = cnt.get(i, 0)
                if c < loop_count - 1:
                    cnt[i] = c + 1; i = t; continue
                cnt[i] = 0
            elif x.target in take_fwd:
                i = t; continue
        i += 1
    return seq

def check(lines, name="", take_fwd=(), verbose=True):
    ins = [Ins(l) for l in lines]
    seq = linearize(ins, take_fwd)
    errs = []
    pos = 0
    last_valu_w = {}
    last_trans_w = {}
    last_mfma_w = {}
    last_mfma_c = {}
    last_salu_m0 = -100
    last_store_data = {}
    last_valu_exec = -100
    vm_q = []
    lg_q = []
    def err(i, x, msg):
        errs.append(f"[{name}] line {i}: {x.text}  :: {msg}")
    for (i, x) in seq:
        k = x.kind
        npos = pos + (x.n if k == "nop" else 1)
        def dist(p): return pos - p - 1
        if k == "wait":
            if x.vm is not None:
                while len(vm_q) > x.vm: vm_q.pop(0)
            if x.lgkm is not None:
                if any(kk == "smem" for kk, _ in lg_q) and x.lgkm != 0:
                    pass
                else:
                    while len(lg_q) > x.lgkm: lg_q.pop(0)
            pos = npos; continue
        touched = set(x.r) | set(x.w)
        for q in vm_q:
            if touched & set(q): err(i, x, f"touches pending vmem dst {sorted(touched & set(q))[:4]}")
        for kk, q in lg_q:
            if touched & set(q): err(i, x, f"touches pending lgkm dst {sorted(touched & set(q))[:4]}")
        if k == "mfma":
            for r in x.r:
                if r in last_valu_w and dist(last_valu_w[r]) < 2: err(i, x, f"VALU->MFMA read {r} dist {dist(last_valu_w[r])} <2")
            for r in x.A + x.B:
                if r in last_mfma_w:
                    p, ps, D = last_mfma_w[r]
                    need = {2: 5, 4: 8, 8: 12, 16: 20}[ps]
                    if dist(p) < need: err(i, x, f"MFMA D->A/B {r} dist {dist(p)} <{need}")
            for r in x.C:
                if r in last_mfma_w:
                    p, ps, D = last_mfma_w[r]
                    if tuple(x.C) == D and ps == x.passes: continue
                    need = {2: 4, 4: 6, 8: 10, 16: 18}[ps]
                    if dist(p) < need: err(i, x, f"MFMA D->C overlap {r} dist {dist(p)} <{need}")
            for r in x.w:
                if r in last_mfma_w and r not in x.C:
                    p, ps, D = last_mfma_w[r]
                    need = {2: 4, 4: 6, 8: 10, 16: 18}[ps]
                    if dist(p) < need: err(i, x, f"MFMA D->D WAW {r} dist {dist(p)} <{need} (conservative)")
            if dist(last_valu_exec) < 4: err(i, x, "VALU exec write -> MFMA <4")
        else:
            if k in ("valu", "vmem", "ds"):
                chk = set(x.r) | set(x.w)
                for r in chk:
                    if r in last_mfma_w:
                        p, ps, D = last_mfma_w[r]
                        need = {2: 5, 4: 8, 8: 12, 16: 20}[ps]
                        if dist(p) < need: err(i, x, f"MFMA D->{k} {r} dist {dist(p)} <{need}")
            if k == "valu":
                for r in x.w:
                    if r in last_mfma_c:
                        p, ps = last_mfma_c[r]
                        need = {2: 1, 4: 3, 8: 7, 16: 15}[ps]
                        if dist(p) < need: err(i, x, f"MFMA C WAR {r} dist {dist(p)} <{need}")
                    if r in last_store_data and dist(last_store_data[r]) < 2: err(i, x, f"wide store data WAR {r}")
                for r in x.r:
                    if r in last_trans_w and not x.trans and dist(last_trans_w[r]) < 1: err(i, x, f"trans->valu {r}")
                    if r[0] == "s" and r in last_valu_w and dist(last_valu_w[r]) < 2 and r not in regs_of("exec"):
                        err(i, x, f"VALU sgpr write->VALU read {r} dist {dist(last_valu_w[r])}<2")
                    if r[0] == "v" and r in last_valu_w:
                        d = dist(last_valu_w[r])
                        if x.base in ("v_readlane_b32", "v_readfirstlane_b32") and d < 1: err(i, x, f"VALU->readlane {r}")
                        if x.base.startswith("v_permlane") and d < 2: err(i, x, f"VALU->permlane {r} {d}")
                        if x.dpp and d < 2: err(i, x, f"VALU->DPP {r} {d}")
                if x.base in ("v_readlane_b32", "v_writelane_b32"):
                    for r in regs_of(x.ops[2]):
                        if r in last_valu_w and dist(last_valu_w[r]) < 4: err(i, x, "lane select sgpr <4")
            if k in ("vmem", "ds"):
                for r in x.w:
                    if r in last_store_data and dist(last_store_data[r]) < 1: err(i, x, f"wide store data WAR {r}")
            if k == "vmem":
                for r in x.r:
                    if r[0] == "s" and r in last_valu_w and dist(last_valu_w[r]) < 5: err(i, x, f"VALU sgpr->VMEM {r} <5")
                    if r in last_trans_w and dist(last_trans_w[r]) < 1: err(i, x, f"trans->vmem {r} (conservative)")
                if getattr(x, "lds", False) and dist(last_salu_m0) < 1: err(i, x, "m0 write->lds dma <1")
            if k == "ds":
                for r in x.r:
                    if r in last_trans_w and dist(last_trans_w[r]) < 1: err(i, x, f"trans->ds {r} (conservative)")
            if k == "salu" or k == "branch" or k == "smem":
                for r in x.r:
                    if r[0] == "s" and r in last_valu_w and dist(last_valu_w[r]) < 1 and False: err(i, x, "valu sgpr->salu")
        if k == "valu":
            for r in x.w:
                last_valu_w[r] = pos
                last_mfma_w.pop(r, None)
                if x.trans: last_trans_w[r] = pos
                else: last_trans_w.pop(r, None)
                if r in regs_of("exec"): last_valu_exec = pos
        elif k == "mfma":
            for r in x.w:
                last_mfma_w[r] = (pos, x.passes, tuple(x.w))
                last_valu_w.pop(r, None); last_trans_w.pop(r, None)
            for r in x.C: last_mfma_c[r] = (pos, x.passes)
        elif k == "salu":
            for r in x.w:
                last_valu_w.pop(r, None)
                if r == ("s", 124): last_salu_m0 = pos
        elif k == "vmem":
            if x.op.startswith("buffer_wbl2") or x.op.startswith("buffer_inv"):
                vm_q.append([])
            else:
                vm_q.append(list(x.w))
            if len(vm_q) > 63: err(i, x, "vmcnt overflow >63 (hw stalls; ok but check)")
            if getattr(x, "store", False) and ("x3" in x.op or "x4" in x.op):
                for r in x.data: last_store_data[r] = pos
            for r in x.w:
                last_valu_w.pop(r, None); last_mfma_w.pop(r, None); last_trans_w.pop(r, None)
        elif k == "ds":
            lg_q.append(("ds", list(x.w)))
            for r in x.w:
                last_valu_w.pop(r, None); last_mfma_w.pop(r, None); last_trans_w.pop(r, None)
        elif k == "smem":
            lg_q.append(("smem", list(x.w)))
            for r in x.w: last_valu_w.pop(r, None)
        pos = npos
    out = []
    seen = set()
    for e in errs:
        if e not in seen:
            seen.add(e); out.append(e)
    if verbose:
        for e in out[:8]: print("HAZARD", e)
    return out

def kernel_wrap(name, body_lines, nvgpr, nsgpr, accum_offset=None):
    if accum_offset is None:
        accum_offset = (nvgpr + 3) // 4 * 4
    code = f".globl {name}\n.p2align 8\n.type {name},@function\n{name}:\n"
    for ln in body_lines:
        code += (ln if ln.endswith(":") or ln.startswith(".") else "    " + ln) + "\n"
    desc = f""".p2align 6
.amdhsa_kernel {name}
  .amdhsa_next_free_vgpr {nvgpr}
  .amdhsa_next_free_sgpr {nsgpr}
  .amdhsa_accum_offset {accum_offset}
  .amdhsa_group_segment_fixed_size 0
  .amdhsa_kernarg_size 104
  .amdhsa_user_sgpr_count 2
  .amdhsa_user_sgpr_kernarg_segment_ptr 1
  .amdhsa_system_sgpr_workgroup_id_x 1
.end_amdhsa_kernel
"""
    return code, desc
```

```python
from asmlib import *
import math

S_, D_, F_, H_, DH = 2048, 448, 1792, 16, 28
WS_Q   = 0x0000000
WS_KV  = 0x0200000
WS_WO  = 0x0300000
WS_W1  = 0x0400000
WS_W2  = 0x0600000
WS_X1  = 0x0800000
WS_XN  = 0x0A00000
WS_H   = 0x0C00000
WS_X2  = 0x1400000
XBYTES = S_ * D_ * 2
HBYTES = S_ * F_ * 2
KA = dict(x=0, wq=8, wk=16, wv=24, wo=32, bx=40, w1=48, b1=56, w2=64, b2=72, out=80, dbg=88, ws=96)

def f32bits(x):
    import struct
    return struct.unpack("<I", struct.pack("<f", x))[0]
def fx(x):
    return hex(f32bits(x))

def srd(A, sd, pl, off, size):
    if off:
        A(f"s_add_u32 {s(sd)}, {s(pl)}, {hex(off)}")
        A(f"s_addc_u32 {s(sd+1)}, {s(pl+1)}, 0")
    else:
        A(f"s_mov_b32 {s(sd)}, {s(pl)}")
        A(f"s_mov_b32 {s(sd+1)}, {s(pl+1)}")
    A(f"s_mov_b32 {s(sd+2)}, {hex(size)}")
    A(f"s_mov_b32 {s(sd+3)}, 0x20000")

QSCALE = (DH ** -0.5) * math.log2(math.e)
```

```python
from common import *

def gen_att(L, name):
    A = Asm()
    QF, O, S, P, KV, RES = 16, 48, 112, 144, 160, 224
    def Kb(i, u): return KV + 16 * (i & 3) + 4 * u
    def Vb(i, u): return KV + 16 * (i & 3) + 8 + 4 * u
    LDS_CMB, LDS_OB, OBP, LDS_ST, LDS_FLAG = 0, 49152, 912, 49152 + 8 * 912, 49152 + 8 * 912 + 256 + 512
    LDS_MX = LDS_ST + 256
    A("s_cmp_ge_u32 s2, 256")
    A(f"s_cbranch_scc1 {name}_end")
    A("s_load_dwordx2 s[4:5], s[0:1], 0")
    A("s_load_dwordx2 s[6:7], s[0:1], 96")
    A("v_and_b32 v1, 63, v0")
    A("v_lshrrev_b32 v2, 6, v0")
    A("v_lshrrev_b32 v3, 5, v1")
    A("v_readfirstlane_b32 s20, v2")
    A("s_and_b32 s21, s2, 7")
    A("s_lshr_b32 s22, s2, 3")
    A("s_lshl_b32 s21, s21, 8")
    A("s_lshl_b32 s22, s22, 3")
    A("s_add_u32 s21, s21, s22")
    A("s_mul_i32 s22, s21, 896")
    A("v_and_b32 v4, 7, v1")
    A("v_mul_u32_u24 v4, 896, v4")
    A("v_bfe_u32 v5, v1, 3, 2")
    A("v_mad_u32_u24 v4, v5, 56, v4")
    A("v_lshl_add_u32 v4, v3, 3, v4")
    A("v_lshlrev_b32 v6, 4, v1")
    A("s_waitcnt lgkmcnt(0)")
    srd(A, 8, 6, WS_Q, XBYTES)
    srd(A, 12, 6, WS_KV, 64 * 4096)
    A(f"buffer_load_dwordx4 {v(P,4)}, v6, s[12:15], 0 offen")
    A(f"buffer_load_dwordx4 {v(P+4,4)}, v6, s[12:15], 0 offen offset:1024")
    for t in range(4):
        A(f"s_xor_b32 s23, s20, {t}")
        A("s_mul_i32 s23, s23, 224")
        A("s_add_u32 s23, s23, s22")
        for e in range(4):
            A(f"buffer_load_dwordx2 {v(QF+8*t+2*e,2)}, v4, s[8:11], s23 offen offset:{16*e}")
    A("v_lshrrev_b32 v7, 4, v1")
    A("v_and_b32 v8, 7, v1")
    A("v_and_b32 v9, 1, v7")
    A("v_lshlrev_b32 v9, 9, v9")
    A("v_lshl_add_u32 v9, v8, 4, v9")
    A("v_lshl_add_u32 v9, v3, 3, v9")
    A("s_lshr_b32 s24, s21, 5")
    A("s_mul_i32 s24, s24, 28")
    A("s_mul_i32 s25, s20, 7")
    A("s_add_u32 s24, s24, s25")
    A("s_lshl_b32 s24, s24, 10")
    A("s_and_b32 s25, s21, 31")
    A("s_lshl_b32 s25, s25, 4")
    A("s_add_u32 s24, s24, s25")
    A("s_add_u32 s25, s24, 4096")
    if L == 1:
        srd(A, 16, 4, 0, XBYTES)
        A("v_mul_u32_u24 v10, 896, v8")
        A("v_lshl_add_u32 v10, v7, 3, v10")
        A("s_mul_i32 s23, s20, 224")
        A("s_add_u32 s23, s23, s22")
        for nt in range(7):
            A(f"buffer_load_dwordx2 {v(RES+2*nt,2)}, v10, s[16:19], s23 offen offset:{32*nt}")
    else:
        srd(A, 16, 6, WS_X2, XBYTES)
        for nt in range(7):
            A(f"buffer_load_dwordx2 {v(RES+2*nt,2)}, v9, s[16:19], {'s24' if nt < 4 else 's25'} offen offset:{1024*(nt%4)}")
    A("v_cmp_eq_u32 s[30:31], 1, v3")
    A("s_mov_b32 s29, 0")
    A("v_mov_b32 v11, 0")
    A("s_waitcnt vmcnt(7)")
    for t in range(4):
        A(f"v_cndmask_b32 {v(QF+8*t+6)}, {v(QF+8*t+6)}, v11, s[30:31]")
        A(f"v_cndmask_b32 {v(QF+8*t+7)}, {v(QF+8*t+7)}, v11, s[30:31]")
    A("s_nop 1")
    for t in range(4):
        A(f"v_mfma_f32_32x32x16_bf16 {v(O+16*t,16)}, {v(P,4)}, {v(QF+8*t,4)}, 0")
    for t in range(4):
        A(f"v_mfma_f32_32x32x16_bf16 {v(O+16*t,16)}, {v(P+4,4)}, {v(QF+8*t+4,4)}, {v(O+16*t,16)}")
    A("s_nop 7")
    A("s_nop 1")
    for t in range(4):
        o = O + 16 * t
        A(f"v_max3_f32 {v(12+t)}, {v(o)}, {v(o+1)}, {v(o+2)}")
        for r in range(3, 15, 2):
            A(f"v_max3_f32 {v(12+t)}, {v(12+t)}, {v(o+r)}, {v(o+r+1)}")
        A(f"v_max_f32 {v(12+t)}, {v(12+t)}, {v(o+15)}")
    A.label(f"{name}_setm")
    for t in range(4):
        A(f"v_mov_b32 {v(S+t)}, {v(12+t)}")
    A("s_nop 1")
    for t in range(4):
        A(f"v_permlane32_swap_b32 {v(12+t)}, {v(S+t)}")
    for t in range(4):
        A(f"v_max_f32 {v(12+t)}, {v(12+t)}, {v(S+t)}")
    for t in range(4):
        A(f"v_cvt_pk_bf16_f32 {v(S+t)}, -{v(12+t)}, -{v(12+t)}")
        A(f"v_lshlrev_b32 {v(S+t)}, 16, {v(S+t)}")
        A(f"v_sub_f32 {v(S+4+t)}, -{v(12+t)}, {v(S+t)}" if False else f"v_add_f32_e64 {v(S+4+t)}, -{v(12+t)}, -{v(S+t)}")
        A(f"v_cvt_pk_bf16_f32 {v(S+t)}, {v(S+t)}, {v(S+4+t)}")
        A(f"v_cndmask_b32 {v(QF+8*t+6)}, {v(QF+8*t+6)}, {v(S+t)}, s[30:31]")
    A("s_lshl_b32 s26, s20, 16")
    A("s_mov_b32 s27, s26")
    def ldK(i):
        A(f"buffer_load_dwordx4 {v(Kb(i,0),4)}, v6, s[12:15], s26 offen")
        A(f"buffer_load_dwordx4 {v(Kb(i,1),4)}, v6, s[12:15], s26 offen offset:1024")
        A("s_add_u32 s26, s26, 4096")
    def ldV(i):
        A(f"buffer_load_dwordx4 {v(Vb(i,0),4)}, v6, s[12:15], s27 offen offset:2048")
        A(f"buffer_load_dwordx4 {v(Vb(i,1),4)}, v6, s[12:15], s27 offen offset:3072")
        A("s_add_u32 s27, s27, 4096")
    for i in range(3):
        ldK(i); ldV(i)
    ldK(3)
    for r in range(64):
        A(f"v_mov_b32 {v(O+r)}, 0")
    for r in range(8):
        A(f"v_mov_b32 {v(P+8+r)}, 0")
    for r in range(4):
        A(f"v_mov_b32 {v(Vb(3,1)+r)}, 0")
    A("s_waitcnt vmcnt(12)")
    A(f"v_mfma_f32_32x32x16_bf16 {v(S,16)}, {v(Kb(0,0),4)}, {v(QF,4)}, 0")
    A(f"v_mfma_f32_32x32x16_bf16 {v(S,16)}, {v(Kb(0,1),4)}, {v(QF+4,4)}, {v(S,16)}")
    A("s_mov_b32 s28, 4")
    A("s_nop 7")
    A("s_nop 2")
    A.label(f"{name}_loop")
    for i in range(4):
        for t in range(4):
            u = 4 * i + t
            sc = S + 16 * (u & 1); sn = S + 16 * ((u + 1) & 1)
            pc = P + 8 * (u & 1); pp = P + 8 * ((u + 1) & 1)
            tn = (t + 1) & 3; inx = i + (1 if t == 3 else 0)
            tp = (t - 1) & 3; ipv = i - (1 if t == 0 else 0)
            e = lambda r: A(f"v_exp_f32 {v(sc+r)}, {v(sc+r)}")
            c = lambda k: A(f"v_cvt_pk_bf16_f32 {v(pc+k)}, {v(sc+2*k)}, {v(sc+2*k+1)}")
            if t == 3: A("s_waitcnt vmcnt(10)")
            A(f"v_mfma_f32_32x32x16_bf16 {v(sn,16)}, {v(Kb(inx,0),4)}, {v(QF+8*tn,4)}, 0")
            e(0); e(1)
            if t == 3: ldK(i + 4)
            if t == 1: ldV(i + 3)
            e(2); c(0); e(3)
            A(f"v_mfma_f32_32x32x16_bf16 {v(O+16*tp,16)}, {v(Vb(ipv,1),4)}, {v(pp+4,4)}, {v(O+16*tp,16)}")
            c(1); e(4); e(5); e(6); c(2); e(7)
            A(f"v_mfma_f32_32x32x16_bf16 {v(sn,16)}, {v(Kb(inx,1),4)}, {v(QF+8*tn+4,4)}, {v(sn,16)}")
            c(3); e(8); e(9); e(10); c(4); e(11)
            if t == 0: A("s_waitcnt vmcnt(10)")
            A(f"v_mfma_f32_32x32x16_bf16 {v(O+16*t,16)}, {v(Vb(i,0),4)}, {v(pc,4)}, {v(O+16*t,16)}")
            c(5); e(12); e(13); e(14); e(15); c(6); c(7)
    A("s_sub_u32 s28, s28, 1")
    A("s_cmp_lg_u32 s28, 0")
    A(f"s_cbranch_scc1 {name}_loop")
    A(f"v_mfma_f32_32x32x16_bf16 {v(O+48,16)}, {v(Vb(3,1),4)}, {v(P+8+4,4)}, {v(O+48,16)}")
    A("s_waitcnt vmcnt(0)")
    srd(A, 32, 6, WS_WO, 392 * 1024)
    A("s_mul_i32 s36, s20, 100352")
    WVR = [112 + 4 * k for k in range(28)] + [16 + 4 * k for k in range(6)]
    def wreg(f):
        return a(4 * f, 4) if f < 64 else v(WVR[f - 64], 4)
    A("s_nop 4")
    for t in range(1, 4):
        A(f"s_xor_b32 s23, s20, {t}")
        A("s_mul_i32 s23, s23, 12288")
        A(f"s_add_u32 s23, s23, {LDS_CMB + (t-1)*4096}")
        A(f"v_add_u32 v10, s23, v6")
        for g in range(4):
            A(f"ds_write_b128 v10, {v(O+16*t+4*g,4)} offset:{1024*g}")
    for f in range(98):
        if f >= 60 and f % 4 == 0: A("s_waitcnt vmcnt(56)")
        A(f"buffer_load_dwordx4 {wreg(f)}, v6, s[32:35], s36 offen offset:{1024*(f%4)}")
        if f % 4 == 3: A("s_add_u32 s36, s36, 4096")
    A("s_mul_i32 s23, s20, 12288")
    A(f"v_add_u32 v10, s23, v6")
    A("s_waitcnt lgkmcnt(0)")
    A("s_barrier")
    for k in range(3):
        for g in range(4):
            A(f"ds_read_b128 {v(O+16*(k+1)+4*g,4)}, v10 offset:{LDS_CMB + 4096*k+1024*g}")
    for k in range(3):
        A(f"s_waitcnt lgkmcnt({8-4*k})")
        for r in range(16):
            A(f"v_add_f32 {v(O+r)}, {v(O+r)}, {v(O+16*(k+1)+r)}")
    A(f"v_mov_b32 v12, {v(O+12)}")
    A(f"v_mov_b32 v13, {v(O+12)}")
    A("s_nop 1")
    A("v_permlane32_swap_b32 v12, v13")
    A(f"s_mov_b32 s37, {fx(2.0**60)}")
    A(f"s_mov_b32 s38, {fx(2.0**-60)}")
    A("v_cmp_nle_f32 vcc, v13, s37" if False else "v_cmp_nge_f32 vcc, s37, v13")
    A("v_cmp_nle_f32 s[40:41], s38, v13")
    A("v_rcp_f32 v13, v13")
    A("s_or_b64 vcc, vcc, s[40:41]")
    A("s_cselect_b32 s39, 1, 0")
    A("v_mov_b32 v14, s39")
    A(f"v_mov_b32 v15, {LDS_FLAG}")
    A("s_lshl_b32 s23, s20, 2")
    A("v_add_u32 v15, s23, v15")
    A("ds_write_b32 v15, v14")
    for r in range(16):
        A(f"v_mul_f32 {v(O+r)}, v13, {v(O+r)}")
    for k in range(8):
        A(f"v_cvt_pk_bf16_f32 {v(O+16+k)}, {v(O+2*k)}, {v(O+2*k+1)}")
    A(f"v_mul_u32_u24 v10, {OBP}, v8")
    A("v_mad_u32_u24 v10, v5, 56, v10")
    A("v_lshl_add_u32 v10, v3, 3, v10")
    A("s_mul_i32 s23, s20, 224")
    A(f"s_add_u32 s23, s23, {LDS_OB}")
    A("v_add_u32 v10, s23, v10")
    for g in range(3):
        A(f"ds_write_b64 v10, {v(O+16+2*g,2)} offset:{16*g}")
    A("s_mov_b32 exec_hi, 0")
    A(f"ds_write_b64 v10, {v(O+16+6,2)} offset:48")
    A("s_mov_b32 exec_hi, -1")
    A(f"v_mul_u32_u24 v10, {OBP}, v8")
    A("v_lshl_add_u32 v10, v7, 4, v10")
    A(f"v_mov_b32 v15, {LDS_FLAG}")
    A("s_waitcnt lgkmcnt(0)")
    A("s_barrier")
    A("ds_read_b128 v[12:15], v15")
    OBR = [40 + 4 * k for k in range(11)] + [240, 244, 248]
    D2 = 84
    for st in range(14):
        A(f"ds_read_b128 {v(OBR[st],4)}, v10 offset:{LDS_OB + 64*st}")
    A("s_waitcnt lgkmcnt(14)")
    A("v_or3_b32 v12, v12, v13, v14")
    A("v_or_b32 v12, v12, v15")
    A("s_nop 0")
    A("v_readfirstlane_b32 s39, v12")
    A("s_nop 3")
    A("s_andn2_b32 s39, s39, s29")
    A("s_cmp_lg_u32 s39, 0")
    A(f"s_cbranch_scc1 {name}_fallback")
    A("s_waitcnt lgkmcnt(0)")
    for nt in range(7):
        for st in range(14):
            f = nt * 14 + st
            if st % 7 == 0:
                A(f"s_waitcnt vmcnt({min(63, 97 - (f + 6))})")
            cc = v(D2 + 4 * nt, 4) if st else "0"
            A(f"v_mfma_f32_16x16x32_bf16 {v(D2+4*nt,4)}, {wreg(f)}, {v(OBR[st],4)}, {cc}")
    X1P, XF = 16, 112
    A("s_nop 7")
    for nt in range(7):
        for k in range(2):
            rr = RES + 2 * nt + k
            A(f"v_lshlrev_b32 v12, 16, {v(rr)}")
            A(f"v_and_b32 v13, 0xffff0000, {v(rr)}")
            A(f"v_add_f32 v12, v12, {v(D2+4*nt+2*k)}")
            A(f"v_add_f32 v13, v13, {v(D2+4*nt+2*k+1)}")
            A(f"v_cvt_pk_bf16_f32 {v(X1P+2*nt+k)}, v12, v13")
            A(f"v_lshlrev_b32 {v(XF+4*nt+2*k)}, 16, {v(X1P+2*nt+k)}")
            A(f"v_and_b32 {v(XF+4*nt+2*k+1)}, 0xffff0000, {v(X1P+2*nt+k)}")
    A(f"v_mov_b32 v12, {v(XF)}")
    A(f"v_mul_f32 v13, {v(XF)}, {v(XF)}")
    for r in range(1, 28):
        A(f"v_add_f32 v12, v12, {v(XF+r)}")
        A(f"v_fmac_f32 v13, {v(XF+r)}, {v(XF+r)}")
    A("v_mov_b32 v14, v12")
    A("v_mov_b32 v15, v13")
    A("s_nop 1")
    A("v_permlane32_swap_b32 v12, v14")
    A("v_permlane32_swap_b32 v13, v15")
    A("v_add_f32 v12, v12, v14")
    A("v_add_f32 v13, v13, v15")
    A("v_mov_b32 v14, v12")
    A("v_mov_b32 v15, v13")
    A("s_nop 1")
    A("v_permlane16_swap_b32 v12, v14")
    A("v_permlane16_swap_b32 v13, v15")
    A("v_add_f32 v12, v12, v14")
    A("v_add_f32 v13, v13, v15")
    A("v_lshlrev_b32 v10, 5, v8")
    A("s_lshl_b32 s23, s20, 3")
    A(f"s_add_u32 s23, s23, {LDS_ST}")
    A("v_add_u32 v11, s23, v10")
    A("ds_write_b64 v11, v[12:13]")
    A("s_waitcnt lgkmcnt(0)")
    A("s_barrier")
    A(f"ds_read_b128 v[32:35], v10 offset:{LDS_ST}")
    A(f"ds_read_b128 v[36:39], v10 offset:{LDS_ST+16}")
    A("v_bfe_u32 v11, v1, 3, 1")
    A(f"v_mul_u32_u24 v11, {hex(WS_XN - WS_X1)}, v11")
    A("v_add_u32 v9, v9, v11")
    A("v_and_b32 v11, 8, v1")
    A("v_cmp_ne_u32 vcc, 0, v11")
    srd(A, 40, 6, WS_X1, WS_XN - WS_X1 + XBYTES)
    A("s_waitcnt lgkmcnt(0)")
    A("v_add_f32 v12, v32, v34")
    A("v_add_f32 v13, v33, v35")
    A("v_add_f32 v14, v36, v38")
    A("v_add_f32 v15, v37, v39")
    A("v_add_f32 v12, v12, v14")
    A("v_add_f32 v13, v13, v15")
    A(f"v_mul_f32 v12, {fx(1.0/D_)}, v12")
    A(f"v_mul_f32 v13, {fx(1.0/D_)}, v13")
    A("v_fma_f32 v13, -v12, v12, v13")
    A("v_max_f32 v13, 0, v13")
    A(f"v_add_f32 v13, {fx(1e-5)}, v13")
    A("v_rsq_f32 v13, v13")
    A("s_nop 0")
    A("v_mul_f32 v12, v12, v13")
    for nt in range(7):
        for k in range(2):
            r0_, r1_ = XF + 4 * nt + 2 * k, XF + 4 * nt + 2 * k + 1
            A(f"v_fma_f32 {v(r0_)}, {v(r0_)}, v13, -v12")
            A(f"v_fma_f32 {v(r1_)}, {v(r1_)}, v13, -v12")
            A(f"v_cvt_pk_bf16_f32 v14, {v(r0_)}, {v(r1_)}")
            A(f"v_cndmask_b32 {v(X1P+2*nt+k)}, {v(X1P+2*nt+k)}, v14, vcc")
        A(f"buffer_store_dwordx2 {v(X1P+2*nt,2)}, v9, s[40:43], {'s24' if nt < 4 else 's25'} offen offset:{1024*(nt%4)}")
    A("s_endpgm")
    A.label(f"{name}_fallback")
    A("s_waitcnt vmcnt(0) lgkmcnt(0)")
    A("s_mov_b32 s29, 1")
    for t in range(4):
        A(f"s_xor_b32 s23, s20, {t}")
        A("s_mul_i32 s23, s23, 224")
        A("s_add_u32 s23, s23, s22")
        for e in range(4):
            A(f"buffer_load_dwordx2 {v(QF+8*t+2*e,2)}, v4, s[8:11], s23 offen offset:{16*e}")
    A("v_mov_b32 v11, 0")
    for t in range(4):
        A(f"v_mov_b32 {v(12+t)}, 0xff800000")
    A("s_waitcnt vmcnt(0)")
    for t in range(4):
        A(f"v_cndmask_b32 {v(QF+8*t+6)}, {v(QF+8*t+6)}, v11, s[30:31]")
        A(f"v_cndmask_b32 {v(QF+8*t+7)}, {v(QF+8*t+7)}, v11, s[30:31]")
    A("s_mov_b32 s26, 0")
    A.label(f"{name}_fbloop")
    A(f"buffer_load_dwordx4 {v(P,4)}, v6, s[12:15], s26 offen")
    A(f"buffer_load_dwordx4 {v(P+4,4)}, v6, s[12:15], s26 offen offset:1024")
    A("s_waitcnt vmcnt(0)")
    for t in range(4):
        A(f"v_mfma_f32_32x32x16_bf16 {v(O+16*t,16)}, {v(P,4)}, {v(QF+8*t,4)}, 0")
    for t in range(4):
        A(f"v_mfma_f32_32x32x16_bf16 {v(O+16*t,16)}, {v(P+4,4)}, {v(QF+8*t+4,4)}, {v(O+16*t,16)}")
    A("s_nop 7")
    A("s_nop 1")
    for t in range(4):
        o = O + 16 * t
        for r in range(0, 16, 2):
            A(f"v_max3_f32 {v(12+t)}, {v(12+t)}, {v(o+r)}, {v(o+r+1)}")
    A("s_add_u32 s26, s26, 4096")
    A(f"s_cmp_lt_u32 s26, {64*4096}")
    A(f"s_cbranch_scc1 {name}_fbloop")
    A("s_barrier")
    A(f"s_branch {name}_setm")
    A.label(f"{name}_end")
    A("s_endpgm")
    errs = check(A.lines, name)
    errs += check(A.lines, name, take_fwd=(f"{name}_fallback",))
    return dict(name=name, lines=A.lines, nvgpr=512, accum=256, nsgpr=48, grid=256, block=256, lds=LDS_FLAG + 64, errs=errs)
```

```python
from common import *

GC1 = -2.0 * math.log2(math.e) * math.sqrt(2.0 / math.pi) * 0.044715
GC2 = -2.0 * math.log2(math.e) * math.sqrt(2.0 / math.pi)

def gen_g1(name):
    A = Asm()
    XF, ACC, AF, BI, T = 16, 128, 192, 224, 240
    RING = 8
    A("s_cmp_ge_u32 s2, 224")
    A(f"s_cbranch_scc1 {name}_end")
    A("s_load_dwordx2 s[4:5], s[0:1], 56")
    A("s_load_dwordx2 s[6:7], s[0:1], 96")
    A("v_and_b32 v1, 63, v0")
    A("v_lshrrev_b32 v2, 6, v0")
    A("v_lshlrev_b32 v6, 4, v1")
    A("v_readfirstlane_b32 s20, v2")
    A("v_lshrrev_b32 v3, 5, v1")
    A("v_lshlrev_b32 v4, 3, v3")
    A("s_and_b32 s21, s2, 7")
    A("s_lshr_b32 s22, s2, 3")
    A("s_and_b32 s23, s22, 1")
    A("s_lshr_b32 s24, s22, 1")
    A("s_lshl_b32 s21, s21, 1")
    A("s_add_u32 s21, s21, s23")
    A("s_lshl_b32 s21, s21, 2")
    A("s_add_u32 s21, s21, s20")
    A("s_waitcnt lgkmcnt(0)")
    srd(A, 8, 6, WS_W1, D_ * F_ * 2)
    srd(A, 12, 6, WS_XN, XBYTES)
    srd(A, 16, 4, 0, F_ * 2)
    A(f"s_mul_i32 s25, s24, {4*28672}")
    A("s_mul_i32 s26, s20, 7168")
    A("s_add_u32 s25, s25, s26")
    def dmaW(c):
        A(f"s_add_u32 m0, s26, {c*28672}")
        A(f"s_add_u32 s27, s25, {c*28672}")
        for i in range(4):
            A(f"buffer_load_dwordx4 v6, s[8:11], s27 offen offset:{1024*i} lds")
        A(f"s_add_u32 m0, s26, {c*28672+4096}")
        A(f"s_add_u32 s27, s25, {c*28672+4096}")
        for i in range(3):
            A(f"buffer_load_dwordx4 v6, s[8:11], s27 offen offset:{1024*i} lds")
    A("s_lshl_b32 s28, s24, 8")
    for c in range(4):
        for g in range(4):
            A(f"buffer_load_dwordx2 {v(ACC+16*c+4*g+2,2)}, v4, s[16:19], s28 offen offset:{64*c+16*g}")
    dmaW(0)
    A("s_mul_i32 s29, s21, 28672")
    for st in range(28):
        A(f"buffer_load_dwordx4 {v(XF+4*st,4)}, v6, s[12:15], s29 offen offset:{1024*(st%4)}")
        if st % 4 == 3 and st < 27: A("s_add_u32 s29, s29, 4096")
    A("s_waitcnt vmcnt(35)")
    dmaW(1); dmaW(2); dmaW(3)
    for c in range(4):
        for g in range(4):
            b = ACC + 16 * c + 4 * g
            A(f"v_lshlrev_b32 {v(b)}, 16, {v(b+2)}")
            A(f"v_and_b32 {v(b+1)}, 0xffff0000, {v(b+2)}")
            A(f"v_lshlrev_b32 {v(b+2)}, 16, {v(b+3)}")
            A(f"v_and_b32 {v(b+3)}, 0xffff0000, {v(b+3)}")
    srd(A, 32, 6, WS_H, HBYTES)
    A("s_mul_i32 s30, s21, 112")
    A("s_lshl_b32 s31, s24, 3")
    A("s_add_u32 s30, s30, s31")
    A("s_lshl_b32 s30, s30, 10")
    A("s_add_u32 s31, s30, 4096")
    A(f"s_mov_b32 s36, {fx(GC1)}")
    A(f"v_mov_b32 v5, {fx(GC2)}")
    def gelu_ops(c):
        ops = []
        b = ACC + 16 * c
        for q in range(4):
            rs = [b + 4 * q + j for j in range(4)]
            ts = [T + j for j in range(4)]
            for r, t in zip(rs, ts): ops.append(f"v_mul_f32 {v(t)}, {v(r)}, {v(r)}")
            for r, t in zip(rs, ts): ops.append(f"v_fma_f32 {v(t)}, {v(t)}, s36, v5")
            for r, t in zip(rs, ts): ops.append(f"v_mul_f32 {v(t)}, {v(r)}, {v(t)}")
            for r, t in zip(rs, ts): ops.append(f"v_exp_f32 {v(t)}, {v(t)}")
            for r, t in zip(rs, ts): ops.append(f"v_add_f32 {v(t)}, 1.0, {v(t)}")
            for r, t in zip(rs, ts): ops.append(f"v_rcp_f32 {v(t)}, {v(t)}")
            for r, t in zip(rs, ts): ops.append(f"v_mul_f32 {v(t)}, {v(r)}, {v(t)}")
            ops.append(f"v_cvt_pk_bf16_f32 {v(T+4+ (2*q)%4 + 4*((q//2)%2))}, {v(ts[0])}, {v(ts[1])}")
            ops.append(f"v_cvt_pk_bf16_f32 {v(T+4+ (2*q+1)%4 + 4*((q//2)%2))}, {v(ts[2])}, {v(ts[3])}")
            if q % 2 == 1:
                u = q // 2
                idx = 2 * c + u
                ops.append(f"buffer_store_dwordx4 {v(T+4+4*u,4)}, v6, s[32:35], {'s30' if idx < 4 else 's31'} offen offset:{1024*(idx%4)}")
        return ops
    AH = 4
    seq = [(c, st) for c in range(4) for st in range(28)]
    def rd(n):
        c, st = seq[n]
        off = c * 28672 + st * 1024
        if c < 2: A(f"ds_read_b128 {v(AF+4*(n%RING),4)}, v6 offset:{off}")
        else: A(f"ds_read_b128 {v(AF+4*(n%RING),4)}, v7 offset:{off-57344}")
    A("v_add_u32 v7, 57344, v6")
    nstores = 0
    for c in range(4):
        if c == 0:
            A("s_waitcnt vmcnt(49)")
        else:
            A(f"s_waitcnt vmcnt({7*(3-c) + nstores})")
        A("s_barrier")
        for n in range(28 * c, 28 * c + AH): rd(n)
        pend = gelu_ops(c - 1) if c > 0 else []
        per = (len(pend) + 25) // 26 if pend else 0
        for st in range(28):
            n = 28 * c + st
            if st + AH < 28: rd(n + AH)
            out = min(AH, 27 - st)
            if c == 0:
                A(f"s_waitcnt vmcnt({21 + 27 - st}) lgkmcnt({out})")
            else:
                A(f"s_waitcnt lgkmcnt({out})")
            A(f"v_mfma_f32_32x32x16_bf16 {v(ACC+16*c,16)}, {v(AF+4*(n%RING),4)}, {v(XF+4*st,4)}, {v(ACC+16*c,16)}")
            if st >= 2:
                for _ in range(per):
                    if pend:
                        o = pend.pop(0)
                        if o.startswith("buffer_store"): nstores += 1
                        A(o)
        while pend:
            o = pend.pop(0)
            if o.startswith("buffer_store"): nstores += 1
            A(o)
    A("s_nop 7")
    A("s_nop 3")
    for o in gelu_ops(3): A(o)
    A.label(f"{name}_end")
    A("s_endpgm")
    errs = check(A.lines, name)
    return dict(name=name, lines=A.lines, nvgpr=256, nsgpr=48, grid=224, block=256, lds=4 * 28672, errs=errs)

def gen_g2(L, name):
    A = Asm()
    ACC, FR, T = 16, 80, 208
    DEPTH = 8
    A("s_cmp_ge_u32 s2, 224")
    A(f"s_cbranch_scc1 {name}_end")
    A("s_load_dwordx4 s[4:7], s[0:1], 72")
    A("s_load_dwordx2 s[8:9], s[0:1], 96")
    A("v_and_b32 v1, 63, v0")
    A("v_lshrrev_b32 v2, 6, v0")
    A("v_lshlrev_b32 v6, 4, v1")
    A("v_readfirstlane_b32 s20, v2")
    A("v_lshrrev_b32 v3, 5, v1")
    A("v_lshlrev_b32 v4, 3, v3")
    A("s_and_b32 s21, s2, 7")
    A("s_lshr_b32 s22, s2, 3")
    A("s_and_b32 s23, s22, 3")
    A("s_lshr_b32 s24, s22, 2")
    A("s_lshl_b32 s21, s21, 2")
    A("s_add_u32 s21, s21, s23")
    A("s_lshr_b32 s25, s20, 1")
    A("s_and_b32 s26, s20, 1")
    A("s_lshl_b32 s21, s21, 1")
    A("s_add_u32 s27, s21, s25")
    A("s_xor_b32 s28, s27, 1")
    A("s_lshl_b32 s24, s24, 1")
    A("s_add_u32 s29, s24, s26")
    A("s_xor_b32 s30, s29, 1")
    A("s_mul_i32 s31, s20, 28672")
    for (d, src) in ((32, 27), (33, 28), (34, 29), (35, 30)):
        A(f"s_mul_i32 {s(d)}, {s(src)}, {112*1024}")
        A(f"s_add_u32 {s(d)}, {s(d)}, s31")
    A("s_waitcnt lgkmcnt(0)")
    srd(A, 12, 8, WS_H, HBYTES)
    srd(A, 16, 8, WS_W2, D_ * F_ * 2)
    srd(A, 40, 8, WS_X1, XBYTES)
    srd(A, 44, 4, 0, D_ * 2)
    A("s_mul_i32 s36, s27, 28")
    A("s_lshl_b32 s37, s29, 1")
    A("s_add_u32 s36, s36, s37")
    A("s_lshl_b32 s36, s36, 10")
    A(f"buffer_load_dwordx4 {v(T,4)}, v6, s[40:43], s36 offen")
    A(f"buffer_load_dwordx4 {v(T+4,4)}, v6, s[40:43], s36 offen offset:1024")
    A("s_lshl_b32 s37, s29, 6")
    for g in range(4):
        A(f"buffer_load_dwordx2 {v(T+8+2*g,2)}, v4, s[44:47], s37 offen offset:{16*g}")
    def ld(st):
        b = FR + 16 * (st % DEPTH)
        o = 1024 * (st % 4)
        A(f"buffer_load_dwordx4 {v(b,4)}, v6, s[12:15], s32 offen offset:{o}")
        A(f"buffer_load_dwordx4 {v(b+8,4)}, v6, s[16:19], s34 offen offset:{o}")
        A(f"buffer_load_dwordx4 {v(b+4,4)}, v6, s[12:15], s33 offen offset:{o}")
        A(f"buffer_load_dwordx4 {v(b+12,4)}, v6, s[16:19], s35 offen offset:{o}")
        if st % 4 == 3:
            for d in (32, 33, 34, 35): A(f"s_add_u32 {s(d)}, {s(d)}, 4096")
    for st in range(DEPTH): ld(st)
    A(f"s_waitcnt vmcnt({4*DEPTH})")
    for k in range(8):
        A(f"v_lshlrev_b32 {v(ACC+2*k)}, 16, {v(T+k)}")
        A(f"v_and_b32 {v(ACC+2*k+1)}, 0xffff0000, {v(T+k)}")
        A(f"v_lshlrev_b32 v8, 16, {v(T+8+k)}")
        A(f"v_and_b32 v9, 0xffff0000, {v(T+8+k)}")
        A(f"v_add_f32 {v(ACC+2*k)}, {v(ACC+2*k)}, v8")
        A(f"v_add_f32 {v(ACC+2*k+1)}, {v(ACC+2*k+1)}, v9")
    A("s_nop 0")
    for st in range(28):
        b = FR + 16 * (st % DEPTH)
        rem = min(DEPTH - 1, 27 - st)
        A(f"s_waitcnt vmcnt({4*rem + 2})")
        c0 = v(ACC, 16)
        A(f"v_mfma_f32_32x32x16_bf16 {v(ACC,16)}, {v(b+8,4)}, {v(b,4)}, {c0}")
        A(f"s_waitcnt vmcnt({4*rem})")
        for (i, j) in ((1, 0), (0, 1), (1, 1)):
            u = 2 * i + j
            cc = v(ACC + 16 * u, 16) if st else "0"
            A(f"v_mfma_f32_32x32x16_bf16 {v(ACC+16*u,16)}, {v(b+8+4*j,4)}, {v(b+4*i,4)}, {cc}")
        if st + DEPTH < 28: ld(st + DEPTH)
    A("s_nop 7")
    A("s_nop 3")
    for u in (2, 1, 3):
        A(f"s_xor_b32 s23, s20, {u}")
        A("s_mul_i32 s23, s23, 12288")
        A(f"s_add_u32 s23, s23, {(u-1)*4096}")
        A("v_add_u32 v10, s23, v6")
        for g in range(4):
            A(f"ds_write_b128 v10, {v(ACC+16*u+4*g,4)} offset:{1024*g}")
    A("s_mul_i32 s23, s20, 12288")
    A("v_add_u32 v10, s23, v6")
    A("s_waitcnt lgkmcnt(0)")
    A("s_barrier")
    for k in range(3):
        for g in range(4):
            A(f"ds_read_b128 {v(FR+16*k+4*g,4)}, v10 offset:{4096*k+1024*g}")
    for k in range(3):
        A(f"s_waitcnt lgkmcnt({8-4*k})")
        for r in range(16):
            A(f"v_add_f32 {v(ACC+r)}, {v(ACC+r)}, {v(FR+16*k+r)}")
    for k in range(8):
        A(f"v_cvt_pk_bf16_f32 {v(T+k)}, {v(ACC+2*k)}, {v(ACC+2*k+1)}")
    if L == 1:
        srd(A, 40, 8, WS_X2, XBYTES)
        A(f"buffer_store_dwordx4 {v(T,4)}, v6, s[40:43], s36 offen")
        A(f"buffer_store_dwordx4 {v(T+4,4)}, v6, s[40:43], s36 offen offset:1024")
    else:
        srd(A, 40, 6, 0, XBYTES)
        A("v_and_b32 v10, 31, v1")
        A("v_mul_u32_u24 v10, 896, v10")
        A("v_lshl_add_u32 v10, v3, 4, v10")
        A("s_mul_i32 s36, s27, 28672")
        A("s_add_u32 s36, s36, s37")
        for p in range(2):
            A(f"v_permlane32_swap_b32 {v(T+4*p)}, {v(T+4*p+2)}")
            A(f"v_permlane32_swap_b32 {v(T+4*p+1)}, {v(T+4*p+3)}")
        for p in range(2):
            A(f"buffer_store_dwordx4 {v(T+4*p,4)}, v10, s[40:43], s36 offen offset:{32*p}")
    A.label(f"{name}_end")
    A("s_endpgm")
    errs = check(A.lines, name)
    return dict(name=name, lines=A.lines, nvgpr=224, nsgpr=48, grid=224, block=256, lds=49152, errs=errs)
```

```python
from common import *

def gen_qkv(L, name):
    A = Asm()
    NREP = 126 if L == 1 else 0
    XF, ACC, CS, AF, ST, ONES = 16, 128, 144, 160, 192, 200
    RING = 8
    A(f"s_cmp_ge_u32 s2, {256 + NREP}")
    A(f"s_cbranch_scc1 {name}_end")
    A("s_load_dwordx8 s[4:11], s[0:1], 0")
    A("s_load_dwordx2 s[12:13], s[0:1], 96")
    if L == 1:
        A("s_load_dwordx2 s[14:15], s[0:1], 32")
        A("s_load_dwordx2 s[16:17], s[0:1], 48")
        A("s_load_dwordx2 s[18:19], s[0:1], 64")
    A("v_and_b32 v1, 63, v0")
    A("v_lshrrev_b32 v2, 6, v0")
    A("s_nop 0")
    A("v_readfirstlane_b32 s20, v2")
    A("v_lshrrev_b32 v3, 2, v1")
    A("v_and_b32 v4, 3, v1")
    A("v_lshlrev_b32 v4, 4, v4")
    A("v_bfe_u32 v5, v1, 2, 2")
    A("v_and_b32 v6, 3, v1")
    A("v_bfe_u32 v7, v1, 4, 1")
    A("v_lshrrev_b32 v8, 5, v1")
    if L == 1:
        A("s_cmp_ge_u32 s2, 256")
        A(f"s_cbranch_scc1 {name}_rep")
    A("s_and_b32 s21, s2, 7")
    A("s_lshr_b32 s22, s2, 3")
    A("s_and_b32 s23, s22, 1")
    A("s_lshr_b32 s24, s22, 1")
    A("s_lshl_b32 s21, s21, 1")
    A("s_add_u32 s21, s21, s23")
    A("s_lshl_b32 s21, s21, 2")
    A("s_add_u32 s21, s21, s20")
    A("s_waitcnt lgkmcnt(0)")
    A("s_cmp_eq_u32 s24, 15")
    A("s_cselect_b32 s28, s10, s8")
    A("s_cselect_b32 s29, s11, s9")
    A("s_cmp_lt_u32 s24, 14")
    A("s_cselect_b32 s28, s6, s28")
    A("s_cselect_b32 s29, s7, s29")
    A(f"s_movk_i32 s30, {D_*DH*2}")
    A(f"s_cselect_b32 s30, {D_*D_*2}, s30")
    A("s_mov_b32 s31, 0x20000")
    A(f"s_cselect_b32 s25, 896, 56")
    A("s_lshl_b32 s26, s24, 6")
    A("s_cselect_b32 s26, s26, 0")
    A.lines.pop(); A.lines.pop()
    A("s_cselect_b32 s26, s24, 0")
    A("s_lshl_b32 s26, s26, 6")
    A("v_mul_lo_u32 v9, v3, s25")
    A("v_add3_u32 v9, v9, v4, s26")
    A("s_mul_i32 s27, s20, 7")
    A("s_lshl_b32 s32, s25, 4")
    A("s_mul_i32 s33, s27, s32")
    A("s_lshl_b32 s34, s27, 10")
    for i in range(7):
        A("s_mov_b32 m0, s34")
        A("s_add_u32 s34, s34, 1024")
        A("buffer_load_dwordx4 v9, s[28:31], s33 offen lds")
        if i < 6: A("s_add_u32 s33, s33, s32")
    if L == 1:
        srd(A, 36, 4, 0, XBYTES)
        A("v_and_b32 v10, 31, v1")
        A("s_mul_i32 s35, s21, 28672")
        A("v_mul_u32_u24 v10, 896, v10")
        A("v_lshl_add_u32 v10, v8, 4, v10")
        for st in range(28):
            A(f"buffer_load_dwordx4 {v(XF+4*st,4)}, v10, s[36:39], s35 offen offset:{32*st}")
    else:
        srd(A, 36, 12, WS_X2, XBYTES)
        A("v_lshlrev_b32 v10, 4, v1")
        A("s_mul_i32 s35, s21, 28672")
        for st in range(28):
            A(f"buffer_load_dwordx4 {v(XF+4*st,4)}, v10, s[36:39], s35 offen offset:{1024*(st%4)}")
            if st % 4 == 3 and st < 27: A("s_add_u32 s35, s35, 4096")
    khf = 8 if L == 1 else 4
    second = 256 if L == 1 else 512
    A(f"v_mad_u32_u24 v11, v8, {khf}, v5")
    A("v_lshlrev_b32 v11, 6, v11")
    A("v_lshl_add_u32 v11, v7, 5, v11")
    A("v_lshl_add_u32 v11, v6, 3, v11")
    for i in range(4): A(f"v_mov_b32 {v(ONES+i)}, 0x3f803f80")
    for i in range(8): A(f"v_mov_b32 {v(ST+i)}, 0")
    A("s_waitcnt vmcnt(28)")
    A("s_barrier")
    A("s_cmp_eq_u32 s24, 15")
    A(f"s_cbranch_scc1 {name}_vbody")

    def body(isV):
        AH = 4
        def rd(st):
            b = AF + 4 * (st % RING)
            A(f"ds_read_b64_tr_b16 {v(b,2)}, v11 offset:{1024*st}")
            A(f"ds_read_b64_tr_b16 {v(b+2,2)}, v11 offset:{1024*st+second}")
        for st in range(AH): rd(st)
        for st in range(28):
            if st + AH < 28: rd(st + AH)
            out = 2 * min(AH, 27 - st)
            A(f"s_waitcnt vmcnt({27-st}) lgkmcnt({out})")
            wf = v(AF + 4 * (st % RING), 4); xf = v(XF + 4 * st, 4)
            c1 = v(ACC, 16) if st else "0"
            c2 = v(CS, 16) if st else "0"
            if not isV:
                A(f"v_mfma_f32_32x32x16_bf16 {v(ACC,16)}, {wf}, {xf}, {c1}")
            else:
                A(f"v_mfma_f32_32x32x16_bf16 {v(ACC,16)}, {xf}, {wf}, {c1}")
            for j in range(4):
                A(f"v_dot2c_f32_bf16 {v(ST+j)}, {v(XF+4*st+j)}, {v(ONES)}")
            if not isV:
                A(f"v_mfma_f32_32x32x16_bf16 {v(CS,16)}, {wf}, {v(ONES,4)}, {c2}")
            else:
                A(f"v_mfma_f32_32x32x16_bf16 {v(CS,16)}, {v(ONES,4)}, {wf}, {c2}")
            for j in range(4):
                A(f"v_dot2c_f32_bf16 {v(ST+4+j)}, {v(XF+4*st+j)}, {v(XF+4*st+j)}")
        A("s_nop 2")
        A(f"v_add_f32 v12, {v(ST)}, {v(ST+1)}")
        A(f"v_add_f32 v14, {v(ST+2)}, {v(ST+3)}")
        A(f"v_add_f32 v13, {v(ST+4)}, {v(ST+5)}")
        A(f"v_add_f32 v15, {v(ST+6)}, {v(ST+7)}")
        A("v_add_f32 v12, v12, v14")
        A("v_add_f32 v13, v13, v15")
        A("v_mov_b32 v14, v12")
        A("v_mov_b32 v15, v13")
        A("s_nop 1")
        A("v_permlane32_swap_b32 v12, v14")
        A("v_permlane32_swap_b32 v13, v15")
        A("v_add_f32 v12, v12, v14")
        A("v_add_f32 v13, v13, v15")
        A(f"v_mul_f32 v12, {fx(1.0/D_)}, v12")
        A(f"v_mul_f32 v13, {fx(1.0/D_)}, v13")
        A("v_fma_f32 v13, -v12, v12, v13")
        A("v_max_f32 v13, 0, v13")
        A(f"v_add_f32 v13, {fx(1e-5)}, v13")
        A("v_rsq_f32 v13, v13")
        A("s_nop 0")

    body(False)
    A("s_cmp_eq_u32 s24, 14")
    A(f"s_cselect_b32 s40, 1.0, {fx(QSCALE)}")
    A("v_mul_f32 v13, s40, v13")
    for r in range(16):
        A(f"v_fma_f32 {v(ACC+r)}, -v12, {v(CS+r)}, {v(ACC+r)}")
    for r in range(16):
        A(f"v_mul_f32 {v(ACC+r)}, v13, {v(ACC+r)}")
    for r in range(8):
        A(f"v_cvt_pk_bf16_f32 {v(CS+r)}, {v(ACC+2*r)}, {v(ACC+2*r+1)}")
    A(f"s_cbranch_scc1 {name}_kstore")
    srd(A, 44, 12, WS_Q, XBYTES)
    A("v_and_b32 v10, 31, v1")
    A("v_mul_u32_u24 v10, 896, v10")
    A("v_lshl_add_u32 v10, v8, 3, v10")
    A("s_mul_i32 s35, s21, 28672")
    A("s_add_u32 s35, s35, s26")
    for g in range(4):
        A(f"buffer_store_dwordx2 {v(CS+2*g,2)}, v10, s[44:47], s35 offen offset:{16*g}")
    A("s_endpgm")
    A.label(f"{name}_kstore")
    A("v_cmp_eq_u32 vcc, 1, v8")
    A("v_mov_b32 v14, 0x3f803f80")
    A("v_mov_b32 v15, 0")
    A(f"v_cndmask_b32 {v(CS+6)}, {v(CS+6)}, v14, vcc")
    A(f"v_cndmask_b32 {v(CS+7)}, {v(CS+7)}, v15, vcc")
    srd(A, 44, 12, WS_KV, 64 * 4096)
    A("v_lshlrev_b32 v10, 4, v1")
    A("s_lshl_b32 s35, s21, 12")
    A(f"buffer_store_dwordx4 {v(CS,4)}, v10, s[44:47], s35 offen")
    A(f"buffer_store_dwordx4 {v(CS+4,4)}, v10, s[44:47], s35 offen offset:1024")
    A("s_endpgm")
    A.label(f"{name}_vbody")
    body(True)
    A("v_mul_f32 v12, v12, v13")
    A("s_lshl_b32 s35, s20, 8")
    A("s_add_u32 s35, s35, 28672")
    A("v_and_b32 v10, 31, v1")
    A("v_lshlrev_b32 v10, 2, v10")
    A("v_add_u32 v10, s35, v10")
    A("ds_write_b32 v10, v13")
    A("ds_write_b32 v10, v12 offset:128")
    A("v_lshlrev_b32 v10, 4, v8")
    A("v_add_u32 v10, s35, v10")
    A("s_waitcnt lgkmcnt(0)")
    RS, MS = XF, XF + 16
    for g in range(4):
        A(f"ds_read_b128 {v(RS+4*g,4)}, v10 offset:{32*g}")
        A(f"ds_read_b128 {v(MS+4*g,4)}, v10 offset:{128+32*g}")
    A("v_and_b32 v14, 31, v1")
    A("v_cmp_eq_u32 vcc, 28, v14")
    A("v_cmp_gt_u32 s[48:49], 28, v14")
    A("v_mov_b32 v15, 0")
    A("v_mov_b32 v14, 0x3f803f80")
    A("v_cndmask_b32 v14, v15, v14, vcc")
    A("s_waitcnt lgkmcnt(0)")
    for r in range(16):
        A(f"v_mul_f32 {v(ACC+r)}, {v(RS+r)}, {v(ACC+r)}")
    for r in range(16):
        A(f"v_fma_f32 {v(ACC+r)}, -{v(MS+r)}, {v(CS+r)}, {v(ACC+r)}")
    for r in range(8):
        A(f"v_cvt_pk_bf16_f32 {v(CS+r)}, {v(ACC+2*r)}, {v(ACC+2*r+1)}")
    for r in range(8):
        A(f"v_cndmask_b32 {v(CS+r)}, v14, {v(CS+r)}, s[48:49]")
    srd(A, 44, 12, WS_KV, 64 * 4096)
    A("v_lshlrev_b32 v10, 4, v1")
    A("s_lshl_b32 s35, s21, 12")
    A(f"buffer_store_dwordx4 {v(CS,4)}, v10, s[44:47], s35 offen offset:2048")
    A(f"buffer_store_dwordx4 {v(CS+4,4)}, v10, s[44:47], s35 offen offset:3072")
    A("s_endpgm")
    if L == 1:
        A.label(f"{name}_rep")
        A("s_sub_u32 s21, s2, 256")
        A("s_waitcnt lgkmcnt(0)")
        A("s_cmp_ge_u32 s21, 112")
        A(f"s_cbranch_scc1 {name}_rep_wo")
        A("s_cmp_ge_u32 s21, 56")
        A(f"s_cbranch_scc1 {name}_rep_w2")
        srd(A, 28, 16, 0, D_ * F_ * 2)
        A("s_mov_b32 s25, 3584")
        A("s_lshl_b32 s26, s21, 6")
        A("s_mul_i32 s41, s21, 28672")
        A(f"s_add_u32 s41, s41, {hex(WS_W1)}")
        A(f"s_branch {name}_rep_go")
        A.label(f"{name}_rep_w2")
        srd(A, 28, 18, 0, D_ * F_ * 2)
        A("s_sub_u32 s21, s21, 56")
        A("s_lshr_b32 s22, s21, 2")
        A("s_and_b32 s23, s21, 3")
        A("s_mov_b32 s25, 896")
        A("s_lshl_b32 s26, s22, 6")
        A(f"s_mul_i32 s42, s23, {448*896}")
        A("s_add_u32 s26, s26, s42")
        A("s_mul_i32 s41, s21, 28672")
        A(f"s_add_u32 s41, s41, {hex(WS_W2)}")
        A.label(f"{name}_rep_go")
        def dma():
            A("v_mul_lo_u32 v9, v3, s25")
            A("v_add3_u32 v9, v9, v4, s26")
            A("s_mul_i32 s27, s20, 7")
            A("s_lshl_b32 s32, s25, 4")
            A("s_mul_i32 s33, s27, s32")
            A("s_lshl_b32 s34, s27, 10")
            for i in range(7):
                A("s_mov_b32 m0, s34")
                A("s_add_u32 s34, s34, 1024")
                A("buffer_load_dwordx4 v9, s[28:31], s33 offen lds")
                if i < 6: A("s_add_u32 s33, s33, s32")
        dma()
        A("v_mad_u32_u24 v11, v8, 4, v5")
        A("v_lshlrev_b32 v11, 6, v11")
        A("v_lshl_add_u32 v11, v7, 5, v11")
        A("v_lshl_add_u32 v11, v6, 3, v11")
        A("s_mul_i32 s34, s20, 7168")
        A("v_add_u32 v11, s34, v11")
        srd(A, 44, 12, 0, 0x1000000)
        A("s_add_u32 s41, s41, s34")
        A("v_lshlrev_b32 v10, 4, v1")
        A("s_waitcnt vmcnt(0)")
        for st in range(7):
            A(f"ds_read_b64_tr_b16 {v(XF+4*st,2)}, v11 offset:{1024*st}")
            A(f"ds_read_b64_tr_b16 {v(XF+4*st+2,2)}, v11 offset:{1024*st+512}")
        for st in range(7):
            A(f"s_waitcnt lgkmcnt({2*(6-st)})")
            A(f"buffer_store_dwordx4 {v(XF+4*st,4)}, v10, s[44:47], s41 offen offset:{1024*(st%4)}")
            if st == 3: A("s_add_u32 s41, s41, 4096")
        A("s_endpgm")
        A.label(f"{name}_rep_wo")
        srd(A, 28, 14, 0, D_ * D_ * 2)
        A("s_sub_u32 s21, s21, 112")
        A("s_mov_b32 s25, 896")
        A("s_lshl_b32 s26, s21, 6")
        dma()
        A("v_lshrrev_b32 v7, 4, v1")
        A("v_lshl_add_u32 v11, v7, 3, v5")
        A("v_lshlrev_b32 v11, 6, v11")
        A("v_lshl_add_u32 v11, v6, 3, v11")
        A("s_lshr_b32 s22, s20, 1")
        A("s_and_b32 s23, s20, 1")
        A("s_lshl_b32 s34, s22, 5")
        A(f"s_mul_i32 s35, s23, {7*2048}")
        A("s_add_u32 s34, s34, s35")
        A("v_add_u32 v11, s34, v11")
        srd(A, 44, 12, WS_WO, 392 * 1024)
        A("s_mul_i32 s41, s21, 28672")
        A("s_mul_i32 s34, s20, 7168")
        A("s_add_u32 s41, s41, s34")
        A("v_lshlrev_b32 v10, 4, v1")
        A("s_waitcnt vmcnt(0)")
        A("s_barrier")
        for st in range(7):
            A(f"ds_read_b64_tr_b16 {v(XF+4*st,2)}, v11 offset:{2048*st}")
            A(f"ds_read_b64_tr_b16 {v(XF+4*st+2,2)}, v11 offset:{2048*st+256}")
        for st in range(7):
            A(f"s_waitcnt lgkmcnt({2*(6-st)})")
            A(f"buffer_store_dwordx4 {v(XF+4*st,4)}, v10, s[44:47], s41 offen offset:{1024*(st%4)}")
            if st == 3: A("s_add_u32 s41, s41, 4096")
    A.label(f"{name}_end")
    A("s_endpgm")
    errs = []
    for tf in ((), (f"{name}_kstore",), (f"{name}_vbody",), (f"{name}_rep",), (f"{name}_rep", f"{name}_rep_w2"), (f"{name}_rep", f"{name}_rep_wo")):
        errs += check(A.lines, name, take_fwd=tf)
    return dict(name=name, lines=A.lines, nvgpr=204, nsgpr=56, grid=256 + NREP, block=256, lds=28672 + 1024, errs=errs)
```

```python
import sys
from common import *
from k_qkv import gen_qkv
from k_att import gen_att
from k_mlp import gen_g1, gen_g2

HDR = open("interleave_layers__grouped_kv_mqa__dense_activation_gelu__prompt.s.ref").read().split("; Override launch")[0]

def build(out, extra_launch=""):
    ks = {}
    for k in (gen_qkv(1, "qkv1_kernel"), gen_att(1, "att1_kernel"), gen_g1("g1_kernel"), gen_g2(1, "g2a_kernel"),
              gen_qkv(2, "qkv2_kernel"), gen_att(2, "att2_kernel"), gen_g2(2, "g2b_kernel")):
        ks[k["name"]] = k
    order = ["qkv1_kernel", "att1_kernel", "g1_kernel", "g2a_kernel", "qkv2_kernel", "att2_kernel", "g1_kernel", "g2b_kernel"]
    txt = HDR
    for n in order:
        k = ks[n]
        txt += f"; @launch kernel={n} grid=({k['grid']},1,1) block=({k['block']},1,1) lds={k['lds']}\n"
    txt += extra_launch
    txt += '.amdgcn_target "amdgcn-amd-amdhsa--gfx950"\n.text\n'
    descs = '.section .rodata,"a"\n'
    nerr = 0
    for k in ks.values():
        c, d = kernel_wrap(k["name"], k["lines"], k["nvgpr"], k["nsgpr"], k.get("accum"))
        txt += c; descs += d
        nerr += len(k["errs"])
    open(out, "w").write(txt + descs)
    print("hazard errors:", nerr)

if __name__ == "__main__":
    build(sys.argv[1] if len(sys.argv) > 1 else "interleave_layers__grouped_kv_mqa__dense_activation_gelu__prompt.s")
```
